```python
import torch

def _softmax(x, axis=-1):
    return torch.softmax(x, dim=axis)
def _gelu(x):
    return torch.nn.functional.gelu(x, approximate="tanh")
def _silu(x):
    return torch.nn.functional.silu(x)
def _sigmoid(x):
    return torch.sigmoid(x)
def _layernorm(x, axis=-1, eps=1e-5):
    m = x.mean(dim=axis, keepdim=True)
    v = x.var(dim=axis, keepdim=True, unbiased=False)
    return (x - m) / torch.sqrt(v + eps)
def _scatter_add(tgt, idx, src, axis=0):
    return tgt.clone().index_add_(axis, idx, src)
def _segment_sum(src, seg, n):
    out = torch.zeros((n,) + src.shape[1:], dtype=src.dtype)
    return out.index_add_(0, seg, src)
def _pad(x, pw):
    flat = tuple(v for pair in reversed(pw) for v in pair)
    return torch.nn.functional.pad(x, flat)

kernel_name = 'parallel_sum__softmax_full_mha__dense_activation_gelu__prompt'

def setup_inputs():

    _w = (lambda a: (lambda t: t.to(torch.bfloat16) if t.is_floating_point() else t)(torch.as_tensor(a)))
    def _A_setup():
        B, S, D = 1, 2048, 1024
        return {
            "x": _w((lambda *s: torch.randn(*s, dtype=torch.bfloat16) * 0.05)(B, S, D)),
            "wqkv": _w((lambda *s: torch.randn(*s, dtype=torch.bfloat16) * 0.05)(D, 3 * D)),
            "wo": _w((lambda *s: torch.randn(*s, dtype=torch.bfloat16) * 0.05)(D, D)),
        }
    _A_in = _A_setup()

    def _B_setup():
        B, S, D, F = 1, 2048, 1024, 3584
        return {
            "x": _w((lambda *s: torch.randn(*s, dtype=torch.bfloat16) * 0.05)(B, S, D)),
            "w1": _w((lambda *s: torch.randn(*s, dtype=torch.bfloat16) * 3.2)(D, F) * (D ** -0.5)),
            "b1": _w((lambda *s: torch.randn(*s, dtype=torch.bfloat16) * 3.2)(F) * 0.01),
            "w2": _w((lambda *s: torch.randn(*s, dtype=torch.bfloat16) * 0.4)(F, D) * (F ** -0.5)),
            "b2": _w((lambda *s: torch.randn(*s, dtype=torch.bfloat16) * 0.4)(D) * 0.01),
        }
    _B_in = _B_setup()

    return {
        "A_x": _A_in["x"],
        "A_wqkv": _A_in["wqkv"],
        "A_wo": _A_in["wo"],
        "B_x": _B_in["x"],
        "B_w1": _B_in["w1"],
        "B_b1": _B_in["b1"],
        "B_w2": _B_in["w2"],
        "B_b2": _B_in["b2"],
    }

def reference(A_x, A_wqkv, A_wo, B_x, B_w1, B_b1, B_w2, B_b2):
    def _A_ref(x, wqkv, wo):
        B, S, D = x.shape
        H = 32; Dh = D // H
        qkv = (lambda x, *d: x.permute(*d))((x @ wqkv).reshape(B, S, 3, H, Dh), 2, 0, 3, 1, 4)
        q, k, v = qkv[0], qkv[1], qkv[2]
        scale = Dh ** -0.5
        scores = torch.einsum("bhqd,bhkd->bhqk", q, k) * scale
        p = _softmax(scores, axis=-1)
        o = torch.einsum("bhqk,bhkd->bhqd", p, v)
        return (lambda x, *d: x.permute(*d))(o, 0, 2, 1, 3).reshape(B, S, D) @ wo

    def _B_ref(x, w1, b1, w2, b2):
        h = torch.einsum("bsd,df->bsf", x, w1) + b1
        h = _gelu(h)
        return torch.einsum("bsf,fd->bsd", h, w2) + b2

    x = A_x
    xn = _layernorm(x, axis=-1)
    return x + _A_ref(xn, A_wqkv, A_wo) + _B_ref(xn, B_w1, B_b1, B_w2, B_b2)
```

```python
class K:
    def __init__(self, name):
        self.name = name
        self.L = []
        self.vm = []
        self.lg = []
    def e(self, s):
        for ln in s.strip("\n").split("\n"):
            self.L.append("    " + ln.strip())
    def label(self, s):
        self.L.append(s + ":")
    def c(self, s):
        self.L.append("    ; " + s)
    def vmem(self, s, tag):
        self.e(s); self.vm.append(tag)
    def lds(self, s, tag):
        self.e(s); self.lg.append(tag)
    def n_after(self, q, pred):
        idx = -1
        for i, t in enumerate(q):
            if pred(t): idx = i
        if idx < 0: return None
        return len(q) - 1 - idx
    def wait_vm(self, pred, emit=True):
        n = self.n_after(self.vm, pred)
        if n is None: return None
        assert n <= 63, n
        if emit: self.e(f"s_waitcnt vmcnt({n})")
        self.vm = self.vm[len(self.vm) - n:] if n else []
        return n
    def wait_lg(self, pred, emit=True):
        n = self.n_after(self.lg, pred)
        if n is None: return None
        n = min(n, 15)
        if emit: self.e(f"s_waitcnt lgkmcnt({n})")
        self.lg = self.lg[len(self.lg) - n:] if n else []
        return n
    def srd(self, d, base, size):
        self.e(f"s_mov_b32 s{d}, s{base}")
        self.e(f"s_mov_b32 s{d+1}, s{base+1}")
        self.e(f"s_mov_b32 s{d+2}, {size}")
        self.e(f"s_mov_b32 s{d+3}, 0x20000")
    def text(self):
        return (f".globl {self.name}\n.p2align 8\n.type {self.name},@function\n{self.name}:\n"
                + "\n".join(self.L) + "\n")

def desc(name, vgpr, accum, sgpr=96):
    return f""".p2align 6
.amdhsa_kernel {name}
  .amdhsa_next_free_vgpr {vgpr}
  .amdhsa_next_free_sgpr {sgpr}
  .amdhsa_accum_offset {accum}
  .amdhsa_group_segment_fixed_size 0
  .amdhsa_kernarg_size 88
  .amdhsa_user_sgpr_count 2
  .amdhsa_user_sgpr_kernarg_segment_ptr 1
  .amdhsa_system_sgpr_workgroup_id_x 1
  .amdhsa_float_denorm_mode_32 3
  .amdhsa_float_denorm_mode_16_64 3
.end_amdhsa_kernel
"""
import struct
def f2u(x):
    return "0x%08x" % struct.unpack("<I", struct.pack("<f", x))[0]
def magic_div(d, maxn):
    for sh in range(10, 24):
        m = ((1 << sh) + d - 1) // d
        if m < (1 << 24) and all((n * m) >> sh == n // d for n in range(maxn)) and maxn * m < (1 << 32):
            return m, sh
    raise Exception("no magic")
```

```python
import math
from asmlib import K, desc, f2u, magic_div
MB = 1 << 20
WS_XN, WS_Q, WS_K, WS_V, WS_A2 = 0, 4*MB, 8*MB, 12*MB, 16*MB
WS_END = 16*MB + 128*144*1024

def gen_attn():
    k = K("attn_kernel")
    e = k.e
    NBUF = 4
    Q = 8
    def qf(X, s): return Q + X*8 + s*4
    NEG = 24
    def neg(X): return NEG + 16*X
    S = 56
    def sb(n): return S + 16*(n % 2)
    PP = 88
    def pb(n): return PP + 8*(n % 2)
    O = 104
    def ob(X): return O + 16*X
    LS = 136
    def lb(X): return LS + 4*X
    ONES = 144
    KF = 148
    def kf(t, s): return KF + (t % 2)*8 + s*4
    VF = 164
    def vf(t, s): return VF + (t % 2)*8 + s*4
    T = 180
    VDMA, VKR, VVR = 2, 3, 4
    e("""
    s_cmp_ge_u32 s2, 256
    s_cbranch_scc1 L_at_end
    s_load_dwordx2 s[28:29], s[0:1], 80
    v_and_b32 v1, 63, v0
    v_lshrrev_b32 v5, 6, v0
    s_and_b32 s32, s2, 7
    s_lshl_b32 s32, s32, 2
    v_readfirstlane_b32 s34, v5
    s_bfe_u32 s33, s2, 0x20003
    s_add_u32 s32, s32, s33
    s_lshr_b32 s33, s2, 5
    """)
    e(f"v_lshlrev_b32 v{VKR}, 4, v1")
    e(f"v_lshlrev_b32 v{VDMA}, 4, v0")
    e(f"""
    v_lshrrev_b32 v5, 5, v1
    v_bfe_u32 v6, v1, 2, 2
    v_lshl_add_u32 v5, v5, 2, v6
    v_lshlrev_b32 v5, 6, v5
    v_and_b32 v6, 3, v1
    v_lshl_add_u32 v5, v6, 4, v5
    v_bfe_u32 v6, v1, 4, 1
    v_lshl_add_u32 v5, v6, 3, v5
    v_add_u32 v{VVR}, 8192, v5
    """)
    e(f"""
    v_lshrrev_b32 v5, 4, v1
    v_xor_b32 v5, v5, v1
    v_and_b32 v5, 1, v5
    v_cmp_eq_u32 vcc, 0, v5
    v_mov_b32 v6, 0x3f803f80
    s_nop 0
    v_cndmask_b32 v{ONES}, 0, v6, vcc
    v_cndmask_b32 v{ONES+1}, 0, v6, vcc
    v_cndmask_b32 v{ONES+2}, 0, v6, vcc
    v_cndmask_b32 v{ONES+3}, 0, v6, vcc
    s_lshl_b32 s35, s32, 17
    s_lshl_b32 s38, s34, 10
    s_waitcnt lgkmcnt(0)
    """)
    k.srd(16, 28, WS_END)
    e(f"s_add_u32 s36, s35, {WS_K}")
    e(f"s_add_u32 s37, s35, {WS_V}")
    e(f"s_lshl_b32 s39, s33, 3")
    e(f"s_lshl_b32 s40, s34, 1")
    e(f"s_add_u32 s39, s39, s40")
    e(f"s_lshl_b32 s41, s39, 11")
    e(f"s_add_u32 s41, s41, s35")
    e(f"s_add_u32 s41, s41, {WS_Q}")
    for X in range(2):
        for s in range(2):
            e(f"buffer_load_dwordx4 v[{qf(X,s)}:{qf(X,s)+3}], v{VKR}, s[16:19], s41 offen offset:{X*2048+s*1024}")
    for s in range(2):
        e(f"buffer_load_dwordx4 v[{kf(0,s)}:{kf(0,s)+3}], v{VKR}, s[16:19], s36 offen offset:{s*1024}")
    SK, SV = 42, 43
    def dma(c, n):
        buf = c % NBUF
        m = f"s_add_u32 m0, s38, {buf*16384 + n*4096}"
        if n < 2: ld = f"buffer_load_dwordx4 v{VDMA if n == 0 else 7}, s[16:19], s{SK} offen lds"
        else:     ld = f"buffer_load_dwordx4 v{VDMA if n == 2 else 7}, s[16:19], s{SV} offen lds"
        return m, ld, ('C', c)
    e(f"v_add_u32 v7, 4096, v{VDMA}")
    e("s_mov_b32 s44, 0")
    e("s_waitcnt vmcnt(0)")
    for X in range(2):
        e(f"v_mfma_f32_32x32x16_bf16 v[{sb(X)}:{sb(X)+15}], v[{kf(0,0)}:{kf(0,0)+3}], v[{qf(X,0)}:{qf(X,0)+3}], 0")
        e(f"v_mfma_f32_32x32x16_bf16 v[{sb(X)}:{sb(X)+15}], v[{kf(0,1)}:{kf(0,1)+3}], v[{qf(X,1)}:{qf(X,1)+3}], v[{sb(X)}:{sb(X)+15}]")
    e("s_nop 15")
    def rowmax(X, dst, first):
        b = sb(X)
        if first:
            e(f"v_max3_f32 v{dst}, v{b}, v{b+1}, v{b+2}")
            e(f"v_max_f32 v{dst}, v{dst}, v{b+15}")
            rest = range(3, 15, 2)
        else:
            rest = range(0, 16, 2)
        for r in rest:
            e(f"v_max3_f32 v{dst}, v{dst}, v{b+r}, v{b+r+1}")
    for X in range(2): rowmax(X, T+X, True)
    k.label("L_at_setmax")
    for X in range(2):
        e(f"v_mov_b32 v{T+2}, v{T+X}")
        e("s_nop 1")
        e(f"v_permlane32_swap_b32 v{T+X}, v{T+2}")
        e("s_nop 1")
        e(f"v_max_f32 v{T+X}, v{T+X}, v{T+2}")
        for r in range(16):
            e(f"v_sub_f32 v{neg(X)+r}, 0, v{T+X}")
    for X in range(2):
        for r in range(16): e(f"v_mov_b32 v{ob(X)+r}, 0")
        for r in range(4): e(f"v_mov_b32 v{lb(X)+r}, 0")
    e(f"s_mov_b32 s{SK}, s36")
    e(f"s_mov_b32 s{SV}, s37")
    def adv():
        return [f"s_add_u32 s{SK}, s{SK}, 8192", f"s_add_u32 s{SV}, s{SV}, 8192"]
    for c in range(NBUF-1):
        for n in range(4):
            m, ld, tag = dma(c, n); e(m); e("s_nop 0"); k.vmem(ld, tag)
        for x in adv(): e(x)
    def kread(t, s):
        c, tt = t // 4, t % 4
        return (f"ds_read_b128 v[{kf(t,s)}:{kf(t,s)+3}], v{VKR} offset:{(c % NBUF)*16384 + tt*2048 + s*1024}", ('K', t))
    def vread(t, s, jj):
        c, tt = t // 4, t % 4
        r = vf(t, s) + 2*jj
        return (f"ds_read_b64_tr_b16 v[{r}:{r+1}], v{VVR} offset:{(c % NBUF)*16384 + (tt*32 + 16*s + 8*jj)*64}", ('V', t))
    def qk(n, s):
        t, X = n // 2, n % 2
        c = f"v[{neg(X)}:{neg(X)+15}]" if s == 0 else f"v[{sb(n)}:{sb(n)+15}]"
        return f"v_mfma_f32_32x32x16_bf16 v[{sb(n)}:{sb(n)+15}], v[{kf(t,s)}:{kf(t,s)+3}], v[{qf(X,s)}:{qf(X,s)+3}], {c}"
    def pv(n, s):
        t, X = n // 2, n % 2
        return f"v_mfma_f32_32x32x16_bf16 v[{ob(X)}:{ob(X)+15}], v[{vf(t,s)}:{vf(t,s)+3}], v[{pb(n)+4*s}:{pb(n)+4*s+3}], v[{ob(X)}:{ob(X)+15}]"
    def sm(n, s):
        X = n % 2
        return f"v_mfma_f32_16x16x32_bf16 v[{lb(X)}:{lb(X)+3}], v[{ONES}:{ONES+3}], v[{pb(n)+4*s}:{pb(n)+4*s+3}], v[{lb(X)}:{lb(X)+3}]"
    k.wait_vm(lambda t: t == ('C', 0))
    e("s_barrier")
    for s in range(2): k.lds(*kread(0, s))
    for s in range(2):
        for jj in range(2): k.lds(*vread(0, s, jj))
    k.wait_lg(lambda t: t == ('K', 0))
    e(qk(0, 0)); e(qk(0, 1))
    for r in range(8): e(f"v_mov_b32 v{pb(1)+r}, 0")
    for r in range(8): e(f"v_mov_b32 v{vf(1,0)+r}, 0")
    e("s_nop 7")
    e("s_mov_b32 s45, 4")
    def phase(n):
        t, X = n // 2, n % 2
        b, p = sb(n), pb(n)
        ex = [f"v_exp_f32 v{b+r}, v{b+r}" for r in range(16)]
        cv = [f"v_cvt_pk_bf16_f32 v{p+r}, v{b+2*r}, v{b+2*r+1}" for r in range(8)]
        side = []
        tn = (n+1) // 2
        if X == 0:
            if (t+1) % 4 == 0:
                side.append(('bar', (t+1)//4))
            side += [('l', kread(t+1, s)) for s in range(2)]
        else:
            side += [('l', vread(t+1, s, jj)) for s in range(2) for jj in range(2)]
            if t % 4 == 3:
                c = (t+1)//4 + NBUF - 1 - 1 + 1
                c = t//4 + NBUF - 1 + 0
        if X == 1 and t % 4 == 3:
            pass
        seq = []
        def M(x): seq.append(('m', x))
        def E(a, b_): seq.extend(('v', x) for x in ex[a:b_])
        def C(a, b_): seq.extend(('v', x) for x in cv[a:b_])
        M(('pv', n-1, 0)); E(0, 3)
        M(('pv', n-1, 1)); E(3, 6)
        M(('qk', n+1, 0)); E(6, 8); C(0, 2)
        M(('qk', n+1, 1)); E(8, 10); C(2, 4)
        M(('sm', n-1, 0)); E(10, 13); C(4, 5)
        M(('sm', n-1, 1)); E(13, 16); C(5, 8)
        dm = []
        if t % 4 == 0 or (t % 4 == 3 and X == 1 and False):
            c = t // 4
            dm = [dma(c + NBUF - 1, 2*X + i) for i in range(2)]
        pos = 0
        for kind, x in seq:
            if kind == 'm':
                if x[0] == 'pv':
                    if x[2] == 0: k.wait_lg(lambda tg: tg == ('V', (n-1)//2))
                    e(pv(x[1], x[2]))
                elif x[0] == 'qk':
                    if x[2] == 0: k.wait_lg(lambda tg: tg == ('K', (n+1)//2))
                    e(qk(x[1], x[2]))
                else:
                    e(sm(x[1], x[2]))
            else:
                e(x)
                pos += 1
                if x.startswith("v_exp"):
                    if X == 0 and pos >= 1 and side:
                        kd, y = side.pop(0)
                        if kd == 'bar':
                            k.wait_vm(lambda tg: tg == ('C', y))
                            k.wait_lg(lambda tg: True)
                            e("s_barrier")
                        else: k.lds(*y)
                    elif X == 1 and pos >= 1 and side:
                        kd, y = side.pop(0); k.lds(*y)
                    elif dm and pos >= 8:
                        if dm[0][0] is not None:
                            e(dm[0][0]); dm[0] = (None, dm[0][1], dm[0][2])
                        else:
                            k.vmem(dm[0][1], dm[0][2]); dm.pop(0)
        assert not side and not dm
        if t % 4 == 0 and X == 1:
            for x in adv(): e(x)
    saveL = list(k.L)
    for n in range(0, 32): phase(n)
    first = k.L[len(saveL):]
    k.L = list(saveL)
    for n in range(32, 64): phase(n)
    second = k.L[len(saveL):]
    if first != second:
        for a, b in zip(first, second):
            if a != b: print("DIFF", a, "|", b)
        print(len(first), len(second))
    k.L = saveL
    e(".p2align 6")
    k.label("L_at_loop")
    k.L += second
    e("s_sub_u32 s45, s45, 1")
    e("s_cmp_lg_u32 s45, 0")
    e("s_cbranch_scc1 L_at_loop")
    e("s_nop 1")
    e(pv(127, 0)); e(pv(127, 1)); e(sm(127, 0)); e(sm(127, 1))
    e("s_waitcnt vmcnt(0) lgkmcnt(0)")
    e("s_nop 15")
    e(f"v_bfe_u32 v5, v1, 4, 1")
    e(f"v_cmp_eq_u32 vcc, 0, v5")
    e("s_nop 1")
    for X in range(2):
        e(f"v_cndmask_b32 v{T+4+X}, v{lb(X)+1}, v{lb(X)}, vcc")
    e(f"v_max_f32 v{T+6}, v{T+4}, v{T+5}")
    e(f"v_add_f32 v{T+6}, v{T+4}, v{T+5}")
    e(f"v_mov_b32 v{T+7}, {f2u(2.0**30)}")
    e(f"v_cmp_nlt_f32 vcc, v{T+6}, v{T+7}")
    e("s_cmp_lg_u32 s44, 0")
    e("s_cbranch_scc1 L_at_fin")
    e("s_cmp_lg_u64 vcc, 0")
    e("s_cselect_b32 s46, 1, 0")
    e(f"v_mov_b32 v{T+7}, s46")
    e(f"v_lshrrev_b32 v{T+8}, 6, v0")
    e(f"v_lshlrev_b32 v{T+8}, 2, v{T+8}")
    e("s_barrier")
    e(f"ds_write_b32 v{T+8}, v{T+7}")
    e("s_waitcnt lgkmcnt(0)")
    e("s_barrier")
    e(f"v_mov_b32 v{T+8}, 0")
    e(f"ds_read_b128 v[{T+12}:{T+15}], v{T+8}")
    e("s_waitcnt lgkmcnt(0)")
    e(f"v_or_b32 v{T+12}, v{T+12}, v{T+13}")
    e(f"v_or3_b32 v{T+12}, v{T+12}, v{T+14}, v{T+15}")
    e("s_nop 0")
    e(f"v_readfirstlane_b32 s46, v{T+12}")
    e("s_nop 3")
    e("s_cmp_eq_u32 s46, 0")
    e("s_cbranch_scc1 L_at_fin")
    e("s_barrier")
    e("s_mov_b32 s44, 1")
    e("s_mov_b32 s46, s36")
    e("s_mov_b32 s47, 64")
    for X in range(2): e(f"v_mov_b32 v{T+X}, 0xff800000")
    k.label("L_at_max")
    for s in range(2):
        e(f"buffer_load_dwordx4 v[{kf(0,s)}:{kf(0,s)+3}], v{VKR}, s[16:19], s46 offen offset:{s*1024}")
    e("s_waitcnt vmcnt(0)")
    for X in range(2):
        e(f"v_mfma_f32_32x32x16_bf16 v[{sb(X)}:{sb(X)+15}], v[{kf(0,0)}:{kf(0,0)+3}], v[{qf(X,0)}:{qf(X,0)+3}], 0")
        e(f"v_mfma_f32_32x32x16_bf16 v[{sb(X)}:{sb(X)+15}], v[{kf(0,1)}:{kf(0,1)+3}], v[{qf(X,1)}:{qf(X,1)+3}], v[{sb(X)}:{sb(X)+15}]")
    e("s_nop 15")
    for X in range(2): rowmax(X, T+X, False)
    e("s_add_u32 s46, s46, 2048")
    e("s_sub_u32 s47, s47, 1")
    e("s_cmp_lg_u32 s47, 0")
    e("s_cbranch_scc1 L_at_max")
    e("s_branch L_at_setmax")
    k.label("L_at_fin")
    for X in range(2): e(f"v_rcp_f32 v{T+4+X}, v{T+4+X}")
    e(f"""
    v_bfe_u32 v5, v1, 4, 1
    v_mul_u32_u24 v5, {144*1024}, v5
    v_lshrrev_b32 v6, 5, v1
    v_lshl_add_u32 v5, v6, 8, v5
    v_and_b32 v6, 15, v1
    v_lshl_add_u32 v5, v6, 4, v5
    s_lshl_b32 s46, s39, 1
    s_mul_i32 s46, s46, 144
    s_add_u32 s46, s46, s32
    s_lshl_b32 s46, s46, 10
    s_add_u32 s46, s46, {WS_A2}
    s_add_u32 s47, s46, {2*144*1024}
    """)
    for X in range(2):
        for r in range(16): e(f"v_mul_f32 v{ob(X)+r}, v{ob(X)+r}, v{T+4+X}")
        for a in range(2):
            d = S + (X*2+a)*4
            for hf in range(2):
                r0 = ob(X) + 4*(a + 2*hf)
                e(f"v_cvt_pk_bf16_f32 v{d+2*hf}, v{r0}, v{r0+1}")
                e(f"v_cvt_pk_bf16_f32 v{d+2*hf+1}, v{r0+2}, v{r0+3}")
            e(f"buffer_store_dwordx4 v[{d}:{d+3}], v5, s[16:19], s{46+X} offen offset:{a*512}")
    k.label("L_at_end")
    e("s_endpgm")
    return k, desc(k.name, 200, 200, 96), f"grid=(256,1,1) block=(256,1,1) lds={NBUF*16384}"

def gen_gemm2():
    k = K("gemm2_kernel")
    e = k.e
    D = 12
    ACC = 16
    def acc(cb, i): return ACC + (cb*2+i)*4
    BF = 48
    def bfr(s, cb): return BF + (s % 2)*16 + cb*4
    AF = 80
    def afr(s, i): return AF + (s % 16)*8 + i*4
    T = 208
    VA0, VA1, VB, VR = 2, 3, 4, 5
    e("""
    s_cmp_ge_u32 s2, 256
    s_cbranch_scc1 L_g2_end
    s_load_dwordx2 s[24:25], s[0:1], 16
    s_load_dwordx2 s[26:27], s[0:1], 48
    s_load_dwordx2 s[28:29], s[0:1], 80
    s_load_dwordx2 s[30:31], s[0:1], 56
    s_load_dwordx2 s[52:53], s[0:1], 0
    s_load_dwordx2 s[54:55], s[0:1], 64
    v_and_b32 v1, 63, v0
    v_lshrrev_b32 v9, 6, v0
    s_and_b32 s32, s2, 7
    s_lshr_b32 s33, s2, 3
    v_readfirstlane_b32 s34, v9
    s_and_b32 s35, s32, 3
    s_lshl_b32 s35, s35, 2
    s_and_b32 s36, s33, 3
    s_add_u32 s35, s35, s36
    s_lshr_b32 s36, s32, 2
    s_lshl_b32 s36, s36, 3
    s_lshr_b32 s37, s33, 2
    s_add_u32 s36, s36, s37
    s_lshl_b32 s38, s34, 10
    """)
    e(f"""
    s_lshl_b32 s39, s35, 3
    s_lshl_b32 s40, s34, 1
    s_add_u32 s39, s39, s40
    s_mul_i32 s40, s39, {144*1024}
    s_add_u32 s40, s40, {WS_A2}
    v_lshlrev_b32 v9, 4, v1
    v_add_u32 v{VA0}, s40, v9
    v_add_u32 v{VA1}, {144*1024}, v{VA0}
    """)
    e(f"""
    v_lshrrev_b32 v9, 3, v0
    v_bfe_u32 v10, v0, 1, 2
    v_bfe_u32 v11, v0, 4, 2
    v_xor_b32 v10, v10, v11
    v_lshlrev_b32 v9, 11, v9
    v_lshl_add_u32 v9, v10, 5, v9
    v_and_b32 v10, 1, v0
    v_lshl_add_u32 v9, v10, 4, v9
    s_lshl_b32 s41, s36, 7
    v_add_u32 v{VB}, s41, v9
    """)
    e(f"""
    v_lshrrev_b32 v9, 2, v1
    v_bfe_u32 v10, v1, 3, 2
    v_lshlrev_b32 v9, 7, v9
    v_and_b32 v11, 3, v1
    v_lshl_add_u32 v9, v11, 3, v9
    """)
    for cb in range(4):
        e(f"v_xor_b32 v11, {cb}, v10")
        e(f"v_lshl_add_u32 v{VR+cb}, v11, 5, v9")
    e("s_waitcnt lgkmcnt(0)")
    k.srd(4, 24, 1024*1024*2)
    k.srd(12, 28, WS_END)
    k.srd(16, 52, 4*MB)
    k.srd(20, 54, 4*MB)
    k.srd(8, 30, 2048)
    SKB, SKA, SQ = 42, 43, 44
    e(f"s_mov_b32 s{SKB}, 0")
    e(f"s_mov_b32 s{SKA}, 0")
    e(f"s_mov_b32 s{SQ}, 0")
    def dma(s):
        return (f"s_add_u32 m0, s38, {(s % 16)*4096}",
                f"buffer_load_dwordx4 v{VB}, s[4:7], s{SKB} offen lds", ('B', s))
    def aload(s, i):
        return (f"buffer_load_dwordx4 v[{afr(s,i)}:{afr(s,i)+3}], v{VA0+i}, s[12:15], s{SKA} offen offset:{(s%4)*1024}", ('A', s))
    def bread(s, cb, jj):
        r = bfr(s, cb) + 2*jj
        return (f"ds_read_b64_tr_b16 v[{r}:{r+1}], v{VR+cb} offset:{(s % 16)*4096 + jj*2048}", ('F', s))
    def post(s):
        L = [f"s_add_u32 s{SKB}, s{SKB}, 65536"]
        if s % 4 == 3:
            L += [f"s_add_u32 s{SKA}, s{SKA}, 4096",
                  f"s_add_u32 s{SQ}, s{SQ}, 1",
                  f"s_cmp_eq_u32 s{SQ}, 8",
                  f"s_cselect_b32 s4, s26, s4",
                  f"s_cselect_b32 s5, s27, s5",
                  f"s_cselect_b32 s6, {3584*1024*2}, s6",
                  f"s_cselect_b32 s{SKB}, 0, s{SKB}"]
        return L
    for s in range(D):
        m, ld, tag = dma(s); e(m); e("s_nop 0"); k.vmem(ld, tag)
        for i in range(2): k.vmem(*aload(s, i))
        for x in post(s): e(x)
    for r in range(32): e(f"v_mov_b32 v{ACC+r}, 0")
    k.wait_vm(lambda t: t == ('B', 3))
    e("s_barrier")
    for cb in range(4):
        for jj in range(2): k.lds(*bread(0, cb, jj))
    e("s_mov_b32 s45, 9")
    def step(s):
        fill = []
        if s % 4 == 3:
            fill.append(('bar', s+4))
        fill += [('l', bread(s+1, cb, jj)) for cb in range(4) for jj in range(2)]
        m, ld, tag = dma(s+D)
        fill2 = [('s', m), ('v', (ld, tag))] + [('v', aload(s+D, i)) for i in range(2)] + [('s', x) for x in post(s+D)]
        k.wait_lg(lambda t: t == ('F', s))
        k.wait_vm(lambda t: t == ('A', s))
        def put(x):
            kd, y = x
            if kd == 'bar':
                k.wait_vm(lambda t: t == ('B', y)); e("s_barrier")
            elif kd == 'l': k.lds(*y)
            elif kd == 'v': k.vmem(*y)
            else: e(y)
        n = 0
        for cb in range(4):
            for i in range(2):
                a = acc(cb, i)
                e(f"v_mfma_f32_16x16x32_bf16 v[{a}:{a+3}], v[{bfr(s,cb)}:{bfr(s,cb)+3}], v[{afr(s,i)}:{afr(s,i)+3}], v[{a}:{a+3}]")
                if fill and fill[0][0] == 'bar': put(fill.pop(0))
                for _ in range(2):
                    if fill: put(fill.pop(0))
                if n >= 2:
                    for _ in range(2):
                        if fill2: put(fill2.pop(0))
                n += 1
        while fill2: put(fill2.pop(0))
        assert not fill
    saveL = list(k.L)
    for s in range(16): step(s)
    first = k.L[len(saveL):]
    k.L = list(saveL)
    for s in range(16, 32): step(s)
    second = k.L[len(saveL):]
    if first != second:
        for a, b in zip(first, second):
            if a != b: print("DIFF g2", a, "|", b)
    k.L = saveL
    e(".p2align 6")
    k.label("L_g2_loop")
    k.L += second
    e("s_sub_u32 s45, s45, 1")
    e("s_cmp_lg_u32 s45, 0")
    e("s_cbranch_scc1 L_g2_loop")
    e("s_waitcnt vmcnt(0) lgkmcnt(0)")
    e(f"""
    v_and_b32 v9, 15, v1
    v_lshrrev_b32 v10, 4, v1
    s_lshl_b32 s46, s39, 4
    v_add_u32 v9, s46, v9
    v_lshlrev_b32 v9, 11, v9
    v_lshlrev_b32 v10, 3, v10
    v_add_u32 v10, s41, v10
    v_add_u32 v9, v9, v10
    v_add_u32 v11, 32768, v9
    """)
    for cb in range(4):
        e(f"buffer_load_dwordx2 v[{AF+2*cb}:{AF+2*cb+1}], v10, s[8:11], 0 offen offset:{32*cb}")
    for i in range(2):
        for cb in range(4):
            r = AF + 8 + (i*4+cb)*2
            e(f"buffer_load_dwordx2 v[{r}:{r+1}], v{9 if i == 0 else 11}, s[16:19], 0 offen offset:{32*cb}")
    e("s_waitcnt vmcnt(0)")
    for i in range(2):
        for cb in range(4):
            a = acc(cb, i); r = AF + 8 + (i*4+cb)*2; bb = AF + 2*cb
            for h in range(2):
                e(f"v_lshlrev_b32 v{T}, 16, v{r+h}")
                e(f"v_and_b32 v{T+1}, 0xffff0000, v{r+h}")
                e(f"v_lshlrev_b32 v{T+2}, 16, v{bb+h}")
                e(f"v_and_b32 v{T+3}, 0xffff0000, v{bb+h}")
                e(f"v_add_f32 v{a+2*h}, v{a+2*h}, v{T+2}")
                e(f"v_add_f32 v{a+2*h+1}, v{a+2*h+1}, v{T+3}")
                e(f"v_add_f32 v{a+2*h}, v{a+2*h}, v{T}")
                e(f"v_add_f32 v{a+2*h+1}, v{a+2*h+1}, v{T+1}")
                e(f"v_cvt_pk_bf16_f32 v{r+h}, v{a+2*h}, v{a+2*h+1}")
            e(f"buffer_store_dwordx2 v[{r}:{r+1}], v{9 if i == 0 else 11}, s[20:23], 0 offen offset:{32*cb}")
    k.label("L_g2_end")
    e("s_endpgm")
    return k, desc(k.name, 216, 216, 96), "grid=(256,1,1) block=(256,1,1) lds=65536"
```

```python
import sys, math
from asmlib import K, desc, f2u, magic_div

NAME = "parallel_sum__softmax_full_mha__dense_activation_gelu__prompt"
MB = 1 << 20
WS_XN, WS_Q, WS_K, WS_V, WS_A2 = 0, 4*MB, 8*MB, 12*MB, 16*MB
WS_END = 16*MB + 128*144*1024
QSCALE = (32 ** -0.5) * math.log2(math.e)

def gen_ln():
    k = K("ln_kernel")
    e = k.e
    e("""
    s_cmp_ge_u32 s2, 256
    s_cbranch_scc1 L_ln_end
    s_load_dwordx2 s[4:5], s[0:1], 0
    s_load_dwordx2 s[6:7], s[0:1], 80
    v_and_b32 v1, 63, v0
    v_and_b32 v2, 7, v0
    v_bfe_u32 v3, v0, 3, 3
    v_lshrrev_b32 v4, 6, v0
    v_lshl_add_u32 v25, v4, 5, v3
    s_lshl_b32 s3, s2, 3
    v_add_u32 v5, s3, v2
    v_lshlrev_b32 v5, 11, v5
    v_lshl_add_u32 v5, v25, 4, v5
    s_lshr_b32 s16, s2, 1
    s_lshl_b32 s16, s16, 15
    s_and_b32 s17, s2, 1
    s_lshl_b32 s17, s17, 7
    s_add_u32 s16, s16, s17
    v_lshlrev_b32 v6, 8, v25
    v_lshl_add_u32 v6, v2, 4, v6
    v_add_u32 v6, s16, v6
    v_lshl_add_u32 v7, v4, 3, v3
    v_lshlrev_b32 v7, 2, v7
    v_lshl_add_u32 v7, v2, 7, v7
    v_lshlrev_b32 v24, 7, v2
    s_waitcnt lgkmcnt(0)
    """)
    k.srd(8, 4, 4*MB)
    k.srd(12, 6, 4*MB)
    for i in range(4):
        e(f"buffer_load_dwordx4 v[{8+4*i}:{11+4*i}], v5, s[8:11], 0 offen offset:{128*i}")
    for i in range(4):
        e(f"s_waitcnt vmcnt({3-i})")
        for j in range(4):
            e(f"v_lshlrev_b32 v{32+8*i+2*j}, 16, v{8+4*i+j}")
            e(f"v_and_b32 v{33+8*i+2*j}, 0xffff0000, v{8+4*i+j}")
    def tree(dst, src, n):
        cur = list(range(src, src+n)); t = 96
        first = True
        while len(cur) > 1:
            nxt = []
            for a in range(0, len(cur), 2):
                d = dst if len(cur) == 2 else t
                if len(cur) != 2: t += 1
                e(f"v_add_f32 v{d}, v{cur[a]}, v{cur[a+1]}")
                nxt.append(d)
            cur = nxt
    def wg_reduce(val, off, dst):
        e(f"ds_write_b32 v7, v{val} offset:{off}")
        e("s_waitcnt lgkmcnt(0)")
        e("s_barrier")
        for i in range(8):
            e(f"ds_read_b128 v[{64+4*i}:{67+4*i}], v24 offset:{off+16*i}")
        e("s_waitcnt lgkmcnt(0)")
        tree(dst, 64, 32)
    tree(26, 32, 32)
    wg_reduce(26, 0, 27)
    e(f"v_mul_f32 v27, {f2u(1.0/1024)}, v27")
    for i in range(32):
        e(f"v_sub_f32 v{64+i}, v{32+i}, v27")
    for i in range(32):
        e(f"v_mul_f32 v{64+i}, v{64+i}, v{64+i}")
    tree(26, 64, 32)
    wg_reduce(26, 1024, 28)
    e(f"v_mul_f32 v28, {f2u(1.0/1024)}, v28")
    e(f"""
    v_cvt_pk_bf16_f32 v27, v27, v28
    v_and_b32 v28, 0xffff0000, v27
    v_lshlrev_b32 v27, 16, v27
    v_add_f32 v28, {f2u(1e-5)}, v28
    v_cvt_pk_bf16_f32 v28, v28, v28
    v_and_b32 v28, 0xffff0000, v28
    v_sqrt_f32 v28, v28
    s_nop 0
    v_cvt_pk_bf16_f32 v28, v28, v28
    v_and_b32 v28, 0xffff0000, v28
    v_rcp_f32 v28, v28
    """)
    for i in range(32):
        e(f"v_sub_f32 v{32+i}, v{32+i}, v27")
    for i in range(16):
        e(f"v_cvt_pk_bf16_f32 v{8+i}, v{32+2*i}, v{33+2*i}")
    for i in range(16):
        e(f"v_lshlrev_b32 v{32+2*i}, 16, v{8+i}")
        e(f"v_and_b32 v{33+2*i}, 0xffff0000, v{8+i}")
    for i in range(32):
        e(f"v_mul_f32 v{32+i}, v{32+i}, v28")
    for i in range(16):
        e(f"v_cvt_pk_bf16_f32 v{8+i}, v{32+2*i}, v{33+2*i}")
    for i in range(4):
        e(f"buffer_store_dwordx4 v[{8+4*i}:{11+4*i}], v6, s[12:15], 0 offen offset:{2048*i}" if i < 2 else
          f"buffer_store_dwordx4 v[{8+4*i}:{11+4*i}], v6, s[12:15], s18 offen offset:{2048*(i-2)}")
        if i == 0: e("s_mov_b32 s18, 4096")
    k.label("L_ln_end")
    e("s_endpgm")
    return k, desc(k.name, 128, 128, 32), "grid=(256,1,1) block=(256,1,1) lds=2048"

def gen_gemm1():
    k = K("gemm1_kernel")
    e = k.e
    P = 4
    ACC = 48
    def acc(cb, i): return ACC + (cb*4+i)*4
    def afr(slot, i): return slot*16 + i*4
    def bfr(cb): return 64 + cb*4
    VQ = 2
    VF = 8
    VA = 15
    VQE, VQO, VFR = 19, 20, 21
    T = 22
    LQ, LF = 0, 49152
    e("""
    s_cmp_ge_u32 s2, 256
    s_cbranch_scc1 L_g1_end
    s_load_dwordx2 s[24:25], s[0:1], 8
    s_load_dwordx2 s[26:27], s[0:1], 32
    s_load_dwordx2 s[28:29], s[0:1], 80
    s_load_dwordx2 s[30:31], s[0:1], 40
    v_and_b32 v1, 63, v0
    v_lshrrev_b32 v22, 6, v0
    s_and_b32 s32, s2, 7
    s_lshr_b32 s33, s2, 3
    v_readfirstlane_b32 s34, v22
    s_and_b32 s35, s32, 1
    s_lshl_b32 s35, s35, 2
    s_and_b32 s36, s33, 3
    s_add_u32 s35, s35, s36
    s_lshr_b32 s36, s32, 1
    s_lshl_b32 s36, s36, 3
    s_lshr_b32 s37, s33, 2
    s_add_u32 s36, s36, s37
    s_lshl_b32 s38, s34, 10
    s_and_b32 s39, s36, 1
    """)
    m12, sh12 = magic_div(12, 1536)
    m14, sh14 = magic_div(14, 1792)
    e("s_mul_i32 s40, s36, 192")
    e("s_mul_i32 s41, s36, 224")
    e("s_movk_i32 s42, 6144")
    e("s_movk_i32 s43, 7168")
    def krow(dst, rho, t1, t2):
        e(f"v_and_b32 v{dst}, 0x63, v{rho}")
        e(f"v_bfe_u32 v{t1}, v{rho}, 2, 2")
        e(f"v_lshl_add_u32 v{dst}, v{t1}, 3, v{dst}")
        e(f"v_bfe_u32 v{t2}, v{rho}, 4, 1")
        e(f"v_lshl_add_u32 v{dst}, v{t2}, 2, v{dst}")
    for n in range(6):
        e(f"v_add_u32 v{T}, {n*256}, v0")
        e(f"v_mul_u32_u24 v{T+1}, {m12}, v{T}")
        e(f"v_lshrrev_b32 v{T+1}, {sh12}, v{T+1}")
        e(f"v_mul_u32_u24 v{T+2}, 12, v{T+1}")
        e(f"v_sub_u32 v{T+2}, v{T}, v{T+2}")
        krow(T+3, T+1, T+4, T+5)
        e(f"v_and_b32 v{T+4}, 1, v{T+4}")
        e(f"v_lshlrev_b32 v{T+4}, 1, v{T+4}")
        e(f"v_xor_b32 v{T+2}, v{T+2}, v{T+4}")
        e(f"v_mul_lo_u32 v{T+3}, v{T+3}, s42")
        e(f"v_lshl_add_u32 v{T+3}, v{T+2}, 4, v{T+3}")
        e(f"v_add_u32 v{VQ+n}, s40, v{T+3}")
    for n in range(7):
        e(f"v_add_u32 v{T}, {n*256}, v0")
        e(f"v_mul_u32_u24 v{T+1}, {m14}, v{T}")
        e(f"v_lshrrev_b32 v{T+1}, {sh14}, v{T+1}")
        e(f"v_mul_u32_u24 v{T+2}, 14, v{T+1}")
        e(f"v_sub_u32 v{T+2}, v{T}, v{T+2}")
        krow(T+3, T+1, T+4, T+5)
        e(f"v_lshl_add_u32 v{T+2}, s39, 1, v{T+2}")
        e(f"v_subrev_u32 v{T+4}, 14, v{T+2}")
        e(f"v_cmp_gt_u32 vcc, 14, v{T+2}")
        e(f"v_mul_lo_u32 v{T+3}, v{T+3}, s43")
        e(f"s_nop 0")
        e(f"v_cndmask_b32 v{T+2}, v{T+4}, v{T+2}, vcc")
        e(f"v_lshl_add_u32 v{T+3}, v{T+2}, 4, v{T+3}")
        e(f"v_add_u32 v{VF+n}, s41, v{T+3}")
    e("s_lshl_b32 s44, s35, 4")
    e("s_lshl_b32 s45, s34, 2")
    e("s_add_u32 s44, s44, s45")
    e("s_lshl_b32 s45, s44, 15")
    e(f"v_lshlrev_b32 v{T}, 4, v1")
    e(f"v_add_u32 v{VA}, s45, v{T}")
    for i in range(1, 4):
        e(f"v_add_u32 v{VA+i}, {i*32768}, v{VA}")
    e(f"""
    v_lshrrev_b32 v{T}, 4, v1
    v_bfe_u32 v{T+1}, v1, 2, 2
    v_lshl_add_u32 v{T+1}, v{T}, 2, v{T+1}
    v_and_b32 v{T+2}, 3, v1
    v_lshlrev_b32 v{T+2}, 3, v{T+2}
    v_and_b32 v{T+3}, 1, v{T}
    v_lshlrev_b32 v{T+3}, 5, v{T+3}
    v_mul_u32_u24 v{T+4}, 192, v{T+1}
    v_add_u32 v{T+4}, v{T+4}, v{T+2}
    v_add_u32 v{VQE}, v{T+4}, v{T+3}
    v_sub_u32 v{VQO}, v{T+4}, v{T+3}
    v_mul_u32_u24 v{T+4}, 224, v{T+1}
    v_add_u32 v{T+4}, v{T+4}, v{T+2}
    v_add_u32 v{VFR}, {LF}, v{T+4}
    s_waitcnt lgkmcnt(0)
    """)
    k.srd(4, 24, 1024*3072*2)
    k.srd(8, 26, 1024*3584*2)
    k.srd(12, 28, 4*MB)
    k.srd(16, 28, WS_END)
    k.srd(20, 30, 3584*2)
    SKQ, SKF, SKA = 46, 47, 48
    e(f"s_mov_b32 s{SKQ}, 0")
    e(f"s_mov_b32 s{SKF}, 0")
    e(f"s_mov_b32 s{SKA}, 0")

    def dma(kind, n, b, T_):
        if kind == 'q':
            return (f"s_add_u32 m0, s38, {LQ + b*24576 + n*4096}",
                    f"buffer_load_dwordx4 v{VQ+n}, s[4:7], s{SKQ} offen lds", ('B', T_, 0 if n <= 2 else 1))
        return (f"s_add_u32 m0, s38, {LF + b*28672 + n*4096}",
                f"buffer_load_dwordx4 v{VF+n}, s[8:11], s{SKF} offen lds", ('B', T_, 0 if n <= 3 else 1))
    FH = [('q',0),('f',0),('q',1),('f',1),('q',2),('f',2),('f',3)]
    SH = [('q',3),('f',4),('q',4),('f',5),('q',5),('f',6)]
    def aload(s, i):
        return (f"buffer_load_dwordx4 a[{afr(s%4,i)}:{afr(s%4,i)+3}], v{VA+i}, s[12:15], s{SKA} offen offset:{(s%4)*1024}", ('A', s))
    def bread(s, cb, jj):
        b, sg = (s >> 2) & 1, s & 3
        if cb < 6:
            v = VQE if cb % 2 == 0 else VQO
            off = b*24576 + sg*6144 + jj*3072 + cb*32
        else:
            v = VFR
            off = b*28672 + sg*7168 + jj*3584 + (cb-6)*32
        r = bfr(cb) + 2*jj
        return (f"ds_read_b64_tr_b16 a[{r}:{r+1}], v{v} offset:{off}", ('F', s, cb))
    for kind, n in FH:
        m, ld, tag = dma(kind, n, 0, 0); e(m); e("s_nop 0"); k.vmem(ld, tag)
    for i in range(4): k.vmem(*aload(0, i))
    for kind, n in SH:
        m, ld, tag = dma(kind, n, 0, 0); e(m); e("s_nop 0"); k.vmem(ld, tag)
    for i in range(4): k.vmem(*aload(1, i))
    for i in range(4): k.vmem(*aload(2, i))
    e(f"s_add_u32 s{SKQ}, s{SKQ}, {128*6144}")
    e(f"s_add_u32 s{SKF}, s{SKF}, {128*7168}")
    e(f"v_lshrrev_b32 v{T}, 4, v1")
    e(f"v_lshlrev_b32 v{T}, 3, v{T}")
    e(f"v_add_u32 v{T}, s41, v{T}")
    e("s_lshl_b32 s49, s39, 5")
    e("s_mul_i32 s50, s39, 192")
    e("s_sub_u32 s50, 192, s50")
    for c in range(7):
        if c < 6: k.vmem(f"buffer_load_dwordx2 v[{T+2+2*c}:{T+3+2*c}], v{T}, s[20:23], s49 offen offset:{32*c}", ('bias',))
        else: k.vmem(f"buffer_load_dwordx2 v[{T+2+2*c}:{T+3+2*c}], v{T}, s[20:23], s50 offen", ('bias',))
    for cb in range(6):
        for i in range(4):
            for r in range(4): e(f"v_mov_b32 v{acc(cb,i)+r}, 0")
    k.wait_vm(lambda t: t[0] == 'bias')
    for c in range(7):
        for i in range(4):
            a = acc(6+c, i)
            e(f"v_lshlrev_b32 v{a}, 16, v{T+2+2*c}")
            e(f"v_and_b32 v{a+1}, 0xffff0000, v{T+2+2*c}")
            e(f"v_lshlrev_b32 v{a+2}, 16, v{T+3+2*c}")
            e(f"v_and_b32 v{a+3}, 0xffff0000, v{T+3+2*c}")
    e("s_barrier")
    for cb in range(P):
        for jj in range(2): k.lds(*bread(0, cb, jj))
    e("s_mov_b32 s51, 4")
    def step(s, emit):
        T_, sg = s >> 2, s & 3
        extra = []
        if sg == 0: extra += [dma(kd, n, (T_+1) & 1, T_+1) for kd, n in FH]
        if sg == 2: extra += [dma(kd, n, (T_+1) & 1, T_+1) for kd, n in SH]
        al = [aload(s+3, i) for i in range(4)]
        pre = {}
        slots = {}
        pos = 0
        for x in extra:
            slots[pos] = x; pos += 1
        for x in al:
            slots[pos] = (None, x[0], x[1]); pos += 1
        for cb in range(13):
            k.wait_lg(lambda t: t == ('F', s, cb))
            if cb == 0:
                k.wait_vm(lambda t: t == ('A', s))
            ex = slots.get(cb)
            for i in range(4):
                a = acc(cb, i)
                e(f"v_mfma_f32_16x16x32_bf16 v[{a}:{a+3}], a[{bfr(cb)}:{bfr(cb)+3}], a[{afr(s%4,i)}:{afr(s%4,i)+3}], v[{a}:{a+3}]")
                if i < 2:
                    c2 = cb + P
                    k.lds(*(bread(s, c2, i) if c2 < 13 else bread(s+1, c2-13, i)))
                if i == 0 and cb == 0 and (s+3) % 4 == 0:
                    e(f"s_add_u32 s{SKA}, s{SKA}, 4096")
                if i == 1 and ex and ex[0]: e(ex[0])
                if i == 2 and ex: k.vmem(ex[1], ex[2])
                if i == 3 and cb == 11 and sg == 2:
                    e(f"s_add_u32 s{SKQ}, s{SKQ}, {128*6144}")
                if i == 3 and cb == 12 and sg == 2:
                    e(f"s_add_u32 s{SKF}, s{SKF}, {128*7168}")
                if i == 3 and cb == 12 - P and sg in (1, 3):
                    want = ('B', T_, 1) if sg == 1 else ('B', T_+1, 0)
                    k.wait_vm(lambda t: t == want)
                    e("s_barrier")
    saveL, savevm, savelg = list(k.L), list(k.vm), list(k.lg)
    k.vm = [('B',0,0)]*7 + [('A',0)]*4 + [('B',0,1)]*6 + [('A',1)]*4 + [('A',2)]*4
    k.vm = k.vm[7:]
    for s in range(8): step(s, True)
    first = k.L[len(saveL):]
    k.L = list(saveL)
    for s in range(8, 16): step(s, True)
    second = k.L[len(saveL):]
    assert first == second, "loop body not steady"
    k.L = saveL
    e(".p2align 6")
    k.label("L_g1_loop")
    k.L += second
    e("s_sub_u32 s51, s51, 1")
    e("s_cmp_lg_u32 s51, 0")
    e("s_cbranch_scc1 L_g1_loop")
    e("s_waitcnt vmcnt(0) lgkmcnt(0)")
    e("s_nop 7")
    e(f"v_lshrrev_b32 v{T}, 4, v1")
    e(f"v_and_b32 v{T+1}, 15, v1")
    e("s_mul_i32 s52, s36, 3")
    e("s_lshl_b32 s53, s35, 3")
    e("s_lshl_b32 s54, s34, 1")
    e("s_add_u32 s53, s53, s54")
    e("s_lshl_b32 s53, s53, 11")
    e(f"s_add_u32 s53, s53, {WS_Q}")
    for gi in range(3):
        e(f"s_add_u32 s55, s52, {gi}")
        e(f"s_lshl_b32 s56, s55, 17")
        e(f"s_add_u32 s56, s56, s53")
        e(f"s_cmp_lt_u32 s55, 32")
        e(f"s_cselect_b32 s57, {f2u(QSCALE)}, 1.0")
        e(f"s_cmp_lt_u32 s55, 64")
        e(f"s_cselect_b32 s58, 9, 4")
        e(f"s_cselect_b32 s59, 4, 6")
        e(f"s_lshl_b32 s60, 16, s59")
        e(f"v_lshlrev_b32 v{T+2}, s58, v{T}")
        e(f"v_lshlrev_b32 v{T+3}, s59, v{T+1}")
        e(f"v_add_u32 v{T+2}, v{T+2}, v{T+3}")
        e(f"s_add_u32 s61, s56, s60")
        for i in range(4):
            d = T + 4 + 4*(i % 2) + 8*(gi % 2) if False else T + 4 + 4*i
            for blk in range(2):
                a = acc(2*gi+blk, i)
                for r in range(4): e(f"v_mul_f32 v{a+r}, s57, v{a+r}")
                e(f"v_cvt_pk_bf16_f32 v{d+2*blk}, v{a}, v{a+1}")
                e(f"v_cvt_pk_bf16_f32 v{d+2*blk+1}, v{a+2}, v{a+3}")
            e(f"buffer_store_dwordx4 v[{d}:{d+3}], v{T+2}, s[16:19], s{56 if i % 2 == 0 else 61} offen offset:{(i>>1)*2048}")
    c0 = -2.0 * math.sqrt(2.0/math.pi) * math.log2(math.e)
    c1 = c0 * 0.044715
    e(f"v_mov_b32 v2, {f2u(c1)}")
    e(f"v_mov_b32 v3, {f2u(c1)}")
    e(f"v_mov_b32 v4, {f2u(c0)}")
    e(f"v_mov_b32 v5, {f2u(c0)}")
    e(f"v_mov_b32 v6, 1.0")
    e(f"v_mov_b32 v7, 1.0")
    e(f"v_lshlrev_b32 v8, 4, v1")
    e(f"v_lshl_add_u32 v9, s39, 3, v8")
    e("s_mul_i32 s52, s36, 7")
    e("s_add_u32 s55, s52, s39")
    e("s_lshr_b32 s55, s55, 1")
    e("s_add_u32 s55, s55, 32")
    e("s_mul_i32 s56, s39, 6")
    e("s_sub_u32 s56, 6, s56")
    e("s_add_u32 s56, s56, s52")
    e("s_lshr_b32 s56, s56, 1")
    e("s_add_u32 s56, s56, 32")
    e("s_mul_i32 s57, s44, 144")
    e("s_add_u32 s55, s55, s57")
    e("s_add_u32 s56, s56, s57")
    e("s_lshl_b32 s55, s55, 10")
    e("s_lshl_b32 s56, s56, 10")
    e(f"s_add_u32 s55, s55, {WS_A2}")
    e(f"s_add_u32 s56, s56, {WS_A2}")
    def gelu4(a, t, d):
        for h in (0, 2):
            e(f"v_pk_mul_f32 v[{t+h}:{t+h+1}], v[{a+h}:{a+h+1}], v[{a+h}:{a+h+1}]")
        for h in (0, 2):
            e(f"v_pk_fma_f32 v[{t+h}:{t+h+1}], v[{t+h}:{t+h+1}], v[2:3], v[4:5]")
        for h in (0, 2):
            e(f"v_pk_mul_f32 v[{t+h}:{t+h+1}], v[{t+h}:{t+h+1}], v[{a+h}:{a+h+1}]")
        for r in range(4): e(f"v_exp_f32 v{t+r}, v{t+r}")
        e("s_nop 0")
        for h in (0, 2):
            e(f"v_pk_add_f32 v[{t+h}:{t+h+1}], v[{t+h}:{t+h+1}], v[6:7]")
        for r in range(4): e(f"v_rcp_f32 v{t+r}, v{t+r}")
        e("s_nop 0")
        for h in (0, 2):
            e(f"v_pk_mul_f32 v[{t+h}:{t+h+1}], v[{t+h}:{t+h+1}], v[{a+h}:{a+h+1}]")
        e(f"v_cvt_pk_bf16_f32 v{d}, v{t}, v{t+1}")
        e(f"v_cvt_pk_bf16_f32 v{d+1}, v{t+2}, v{t+3}")
    cnt = 0
    for i in range(4):
        for pr in range(4):
            d = 24 + 4*(cnt % 4); cnt += 1
            if pr < 3:
                gelu4(acc(6+2*pr, i), 12, d)
                gelu4(acc(7+2*pr, i), 16, d+2)
                e(f"buffer_store_dwordx4 v[{d}:{d+3}], v8, s[16:19], s55 offen offset:{pr*1024}")
            else:
                gelu4(acc(12, i), 12, d)
                e(f"buffer_store_dwordx2 v[{d}:{d+1}], v9, s[16:19], s56 offen")
        if i < 3:
            e(f"s_add_u32 s55, s55, {144*1024}")
            e(f"s_add_u32 s56, s56, {144*1024}")
    k.label("L_g1_end")
    e("s_endpgm")
    return k, desc(k.name, 256+116, 256, 96), "grid=(256,1,1) block=(256,1,1) lds=106496"

HEADER = open("cdna_kernels/" + NAME + ".s.ref").read().split("; Override launch")[0]

def build(kernels, path):
    out = HEADER
    for kk, d, launch in kernels:
        out += f"; @launch kernel={kk.name} {launch}\n"
    out += '.amdgcn_target "amdgcn-amd-amdhsa--gfx950"\n.text\n'
    for kk, d, launch in kernels:
        out += kk.text()
    out += '.section .rodata,"a"\n'
    for kk, d, launch in kernels:
        out += d
    open(path, "w").write(out)

if __name__ == "__main__":
    import gen2
    ks = [gen_ln(), gen_gemm1(), gen2.gen_attn(), gen2.gen_gemm2()]
    build(ks, sys.argv[1] if len(sys.argv) > 1 else "cdna_kernels/" + NAME + ".s")
```
